```python
import torch

def _softmax(x, axis=-1):
    return torch.softmax(x, dim=axis)

def _gelu(x):
    return torch.nn.functional.gelu(x, approximate='tanh')

def _silu(x):
    return torch.nn.functional.silu(x)

def _sigmoid(x):
    return torch.sigmoid(x)

def _layernorm(x, axis=-1, eps=1e-05):
    m = x.mean(dim=axis, keepdim=True)
    v = x.var(dim=axis, keepdim=True, unbiased=False)
    return (x - m) / torch.sqrt(v + eps)

def _scatter_add(tgt, idx, src, axis=0):
    return tgt.clone().index_add_(axis, idx, src)

def _segment_sum(src, seg, n):
    out = torch.zeros((n,) + src.shape[1:], dtype=src.dtype)
    return out.index_add_(0, seg, src)

def _pad(x, pw):
    flat = tuple((v for pair in reversed(pw) for v in pair))
    return torch.nn.functional.pad(x, flat)
kernel_name = 'adaLN_cond__spectral_fnet__mixer_gmlp__prompt'

def setup_inputs():

    _w = lambda a: (lambda t: t.to(torch.bfloat16) if t.is_floating_point() else t)(torch.as_tensor(a))

    def _A_setup():
        B, S, D = (1, 2048, 512)
        ns = torch.arange(S)[:, None] * torch.arange(S)[None, :]
        nd = torch.arange(D)[:, None] * torch.arange(D)[None, :]
        Ws_re = torch.cos(-2.0 * torch.pi * ns / S).to(float)
        Ws_im = torch.sin(-2.0 * torch.pi * ns / S).to(float)
        Wd_re = torch.cos(-2.0 * torch.pi * nd / D).to(float)
        Wd_im = torch.sin(-2.0 * torch.pi * nd / D).to(float)
        return {'x': _w((lambda *s: torch.randn(*s, dtype=torch.bfloat16) * 0.05)(B, S, D)), 'dft_seq_re': _w(Ws_re), 'dft_seq_im': _w(Ws_im), 'dft_hid_re': _w(Wd_re), 'dft_hid_im': _w(Wd_im)}
    _A_in = _A_setup()

    def _B_setup():
        B, S, D, F = (1, 2048, 512, 1792)
        Fh = F // 2
        return {'x': _w((lambda *s: torch.randn(*s, dtype=torch.bfloat16) * 0.05)(B, S, D)), 'w_in': _w((lambda *s: torch.randn(*s, dtype=torch.bfloat16) * 3.2)(D, 2 * Fh)), 'w_sp': _w(0.01 * (lambda *s: torch.randn(*s, dtype=torch.bfloat16) * 3.2)(S, S)), 'b_sp': _w(1.0 + 0.01 * (lambda *s: torch.randn(*s, dtype=torch.bfloat16) * 1.6)(S)), 'w_out': _w((lambda *s: torch.randn(*s, dtype=torch.bfloat16) * 1.6)(Fh, D))}
    _B_in = _B_setup()
    return {'A_x': _A_in['x'], 'A_dft_seq_re': _A_in['dft_seq_re'], 'A_dft_seq_im': _A_in['dft_seq_im'], 'A_dft_hid_re': _A_in['dft_hid_re'], 'A_dft_hid_im': _A_in['dft_hid_im'], 'B_x': _B_in['x'], 'B_w_in': _B_in['w_in'], 'B_w_sp': _B_in['w_sp'], 'B_b_sp': _B_in['b_sp'], 'B_w_out': _B_in['w_out'], 'c': _w((lambda *s: torch.randn(*s, dtype=torch.bfloat16) * 0.1)(1, 512) * 8.0), 'w_mod': _w((lambda *s: torch.randn(*s, dtype=torch.bfloat16) * 0.1)(512, 6 * 512) * 512 ** (-0.5) * 8.0)}

def reference(A_x, A_dft_seq_re, A_dft_seq_im, A_dft_hid_re, A_dft_hid_im, B_x, B_w_in, B_w_sp, B_b_sp, B_w_out, c, w_mod):

    def _A_ref(x, dft_seq_re, dft_seq_im, dft_hid_re, dft_hid_im):
        a = torch.einsum('bsd,ed->bse', x, dft_hid_re)
        b = torch.einsum('bsd,ed->bse', x, dft_hid_im)
        y = torch.einsum('ts,bse->bte', dft_seq_re, a) - torch.einsum('ts,bse->bte', dft_seq_im, b)
        return y

    def _B_ref(x, w_in, w_sp, b_sp, w_out):
        B, S, D = x.shape
        F = w_in.shape[-1]
        Fh = F // 2
        z = _gelu(torch.einsum('bsd,df->bsf', x, w_in))
        z1 = z[..., :Fh].clone()
        z2 = _layernorm(z[..., Fh:], axis=-1)
        g = torch.einsum('ts,bsf->btf', w_sp, z2) + b_sp[None, :, None]
        return torch.einsum('bsf,fd->bsd', z1 * g, w_out)
    x = A_x
    mod = (_silu(c) @ w_mod).reshape(c.shape[0], 6, 1, -1)
    sa, ca, ga, sb, cb, gb = (mod[:, 0].clone(), mod[:, 1].clone(), mod[:, 2].clone(), mod[:, 3].clone(), mod[:, 4].clone(), mod[:, 5].clone())
    h = _layernorm(x, axis=-1) * (1 + ca) + sa
    x = x + ga * _A_ref(h, A_dft_seq_re, A_dft_seq_im, A_dft_hid_re, A_dft_hid_im)
    h = _layernorm(x, axis=-1) * (1 + cb) + sb
    x = x + gb * _B_ref(h, B_w_in, B_w_sp, B_b_sp, B_w_out)
    return x
```

```python
import re

_REG = re.compile(r'(?<![\w.])([vas])(?:\[(\d+):(\d+)\]|(\d+))(?![\w])')

def regs_of(tok):
    tok = tok.strip()
    neg = tok.lstrip('-').replace('abs(', '').replace(')', '').replace('|', '')
    out = []
    if neg == 'vcc': return [('s', 'vcc')]
    if neg in ('vcc_lo', 'vcc_hi'): return [('s', 'vcc')]
    if neg == 'exec': return [('s', 'exec')]
    if neg == 'm0': return [('s', 'm0')]
    m = re.fullmatch(r'([vas])\[(\d+):(\d+)\]', neg)
    if m: return [(m.group(1), i) for i in range(int(m.group(2)), int(m.group(3)) + 1)]
    m = re.fullmatch(r'([vas])(\d+)', neg)
    if m: return [(m.group(1), int(m.group(2)))]
    return out

TRANS = ('v_exp_f32', 'v_log_f32', 'v_rcp_f32', 'v_rsq_f32', 'v_sqrt_f32', 'v_sin_f32', 'v_cos_f32')

class Ins:
    __slots__ = ('text', 'op', 'kind', 'wr', 'rd', 'dpp', 'passes', 'srcC', 'ab', 'nops', 'label', 'target', 'wide_store', 'lds_dma', 'data')
    def __init__(self, text):
        self.text = text
        t = text.split(';')[0].split('//')[0].strip()
        self.label = None; self.target = None; self.kind = 'other'; self.op = ''
        self.wr = []; self.rd = []; self.dpp = False; self.passes = 0; self.srcC = []; self.ab = []
        self.nops = 1; self.wide_store = False; self.lds_dma = False; self.data = []
        if not t: self.kind = 'empty'; self.nops = 0; return
        if t.endswith(':'): self.kind = 'label'; self.label = t[:-1]; self.nops = 0; return
        if t.startswith('.'): self.kind = 'directive'; self.nops = 0; return
        parts = t.split(None, 1)
        op = parts[0]; self.op = op
        rest = parts[1] if len(parts) > 1 else ''
        ops = []; depth = 0; cur = ''
        for ch in rest:
            if ch == '[': depth += 1
            if ch == ']': depth -= 1
            if ch == ',' and depth == 0: ops.append(cur); cur = ''
            else: cur += ch
        if cur.strip(): ops.append(cur)
        mods = ''
        if ops:
            lp = ops[-1].strip().split(None, 1)
            ops[-1] = lp[0]
            mods = lp[1] if len(lp) > 1 else ''
        ops = [o.strip() for o in ops]
        R = [regs_of(o) for o in ops]
        allmods = mods
        if op == 's_nop':
            self.kind = 'nop'; self.nops = int(ops[0], 0) + 1; return
        if op.startswith('s_cbranch') or op == 's_branch':
            self.kind = 'branch'; self.target = ops[0]; return
        if op.startswith('v_mfma'):
            self.kind = 'mfma'
            self.passes = 8 if '32x32' in op else 4
            self.wr = R[0]; self.ab = R[1] + R[2]; self.srcC = R[3]; self.rd = self.ab + self.srcC
            return
        if op.startswith('v_'):
            self.kind = 'valu'
            self.dpp = ('quad_perm' in allmods or 'row_' in allmods or op.endswith('_dpp') or 'wave_' in allmods)
            if op.startswith('v_cmp'):
                self.wr = R[0]; self.rd = sum(R[1:], [])
                if op.startswith('v_cmpx'): self.wr = self.wr + [('s', 'exec')]
            elif op.startswith('v_permlane') and 'swap' in op:
                self.wr = R[0] + R[1]; self.rd = R[0] + R[1]; self.kind = 'permlane'
            elif op in ('v_readfirstlane_b32', 'v_readlane_b32'):
                self.wr = R[0]; self.rd = sum(R[1:], []); self.kind = 'readlane'
            elif op in ('v_add_co_u32', 'v_sub_co_u32', 'v_addc_co_u32', 'v_subb_co_u32', 'v_mad_u64_u32'):
                self.wr = R[0] + R[1]; self.rd = sum(R[2:], [])
            else:
                self.wr = R[0]; self.rd = sum(R[1:], [])
                if op.startswith(('v_fmac', 'v_pk_fmac', 'v_dot2c', 'v_writelane')) or self.dpp or 'op_sel' in allmods and 'cvt' in op:
                    self.rd = self.rd + R[0]
                if op.startswith('v_cndmask') and len(ops) == 3: self.rd = self.rd + [('s', 'vcc')]
            return
        if op.startswith('ds_'):
            self.kind = 'ds'
            mo = re.search(r'offset:(\d+)', allmods)
            if mo: assert int(mo.group(1)) < 65536, text
            if op.startswith(('ds_read', 'ds_bpermute', 'ds_permute', 'ds_swizzle')):
                self.wr = R[0]; self.rd = sum(R[1:], [])
            else:
                self.rd = sum(R, [])
            return
        if op.startswith(('buffer_', 'global_', 'flat_')):
            self.kind = 'vmem'
            mo = re.search(r'offset:(\d+)', allmods)
            if mo: assert int(mo.group(1)) < 4096, text
            lds = ' lds' in (' ' + allmods) or op.startswith('global_load_lds')
            if op.startswith('buffer_load'):
                if lds:
                    self.lds_dma = True; self.rd = sum(R, []) + [('s', 'm0')]
                else:
                    self.wr = R[0]; self.rd = sum(R[1:], [])
            elif op.startswith('buffer_store') or op.startswith('buffer_atomic'):
                self.rd = sum(R, []); self.data = R[0]
                self.wide_store = op.endswith(('x3', 'x4'))
            elif op.startswith('global_load'):
                if lds: self.lds_dma = True; self.rd = sum(R, []) + [('s', 'm0')]
                else: self.wr = R[0]; self.rd = sum(R[1:], [])
            elif op.startswith('global_store') or op.startswith('global_atomic'):
                self.rd = sum(R, []); self.data = R[1]
                self.wide_store = op.endswith(('x3', 'x4'))
            else:
                self.rd = sum(R, [])
            return
        if op.startswith('s_'):
            self.kind = 'salu'
            if op.startswith(('s_cmp', 's_bitcmp', 's_waitcnt', 's_barrier', 's_endpgm', 's_setprio', 's_sleep', 's_sethalt')):
                self.rd = sum(R, [])
            elif op.startswith(('s_load', 's_buffer_load', 's_memtime', 's_memrealtime')):
                self.kind = 'smem'; self.wr = R[0] if R else []; self.rd = sum(R[1:], [])
            elif 'saveexec' in op:
                self.wr = R[0] + [('s', 'exec')]; self.rd = sum(R[1:], [])
            else:
                self.wr = R[0] if R else []; self.rd = sum(R[1:], [])
            return

class HazState:
    def __init__(self):
        self.pos = 0
        self.valu_w = {}
        self.trans_w = {}
        self.mfma_w = {}
        self.mfma_c = {}
        self.store_d = {}
        self.vsgpr_w = {}
        self.m0_w = -100
        self.exec_valu_w = -100
    def need(self, I):
        p = self.pos; need = 0
        def req(prod, n):
            nonlocal need
            have = p - prod - 1
            if have < n: need = max(need, n - have)
        isv = lambda r: r[0] in 'va'
        k = I.kind
        xdl_rd = {4: 8, 8: 12, 2: 5, 16: 20}
        if k == 'mfma':
            for r in I.rd:
                if r in self.valu_w: req(self.valu_w[r], 2)
            for r in I.ab:
                if r in self.mfma_w: req(self.mfma_w[r][0], xdl_rd[self.mfma_w[r][1]])
            for r in I.srcC:
                if r in self.mfma_w:
                    pp, ps = self.mfma_w[r]
                    if ps != I.passes: req(pp, {4: 6, 8: 10}[ps])
            req(self.exec_valu_w, 4)
        if k in ('valu', 'permlane', 'readlane'):
            for r in I.rd + I.wr:
                if r in self.mfma_w: req(self.mfma_w[r][0], xdl_rd[self.mfma_w[r][1]])
            for r in I.wr:
                if r in self.mfma_c: req(self.mfma_c[r][0], {4: 3, 8: 7}[self.mfma_c[r][1]])
                if r in self.store_d: req(self.store_d[r], 2)
            if not I.op.startswith(TRANS):
                for r in I.rd:
                    if r in self.trans_w: req(self.trans_w[r], 1)
            for r in I.rd:
                if r[0] == 's' and r in self.vsgpr_w:
                    n = 2
                    if k == 'readlane': n = 4
                    req(self.vsgpr_w[r], n)
            if I.dpp:
                for r in I.rd:
                    if isv(r) and r in self.valu_w: req(self.valu_w[r], 2)
                req(self.exec_valu_w, 5)
            if k == 'permlane':
                for r in I.rd:
                    if r in self.valu_w: req(self.valu_w[r], 2)
                req(self.exec_valu_w, 4)
            if k == 'readlane':
                for r in I.rd:
                    if isv(r) and r in self.valu_w: req(self.valu_w[r], 1)
                req(self.exec_valu_w, 4)
        if k in ('vmem', 'ds'):
            for r in I.rd + I.wr:
                if r in self.mfma_w: req(self.mfma_w[r][0], xdl_rd[self.mfma_w[r][1]])
            for r in I.rd:
                if r[0] == 's' and r in self.vsgpr_w: req(self.vsgpr_w[r], 5)
            for r in I.wr:
                if r in self.store_d: req(self.store_d[r], 1)
                if r in self.mfma_c: req(self.mfma_c[r][0], {4: 3, 8: 7}[self.mfma_c[r][1]])
            if I.lds_dma: req(self.m0_w, 1)
        if k in ('salu', 'smem', 'branch'):
            for r in I.rd:
                if r[0] == 's' and r in self.vsgpr_w: req(self.vsgpr_w[r], 1)
            if k == 'branch' and I.op.startswith('s_cbranch_vcc') and ('s', 'vcc') in self.vsgpr_w:
                req(self.vsgpr_w[('s', 'vcc')], 5)
            if k == 'branch' and I.op.startswith('s_cbranch_exec'): req(self.exec_valu_w, 5)
        return need
    def apply(self, I):
        p = self.pos; k = I.kind
        if k in ('valu', 'permlane', 'readlane'):
            for r in I.wr:
                if r[0] in 'va':
                    self.valu_w[r] = p
                    self.mfma_w.pop(r, None)
                    if I.op.startswith(TRANS): self.trans_w[r] = p
                    else: self.trans_w.pop(r, None)
                else:
                    self.vsgpr_w[r] = p
                    if r == ('s', 'exec'): self.exec_valu_w = p
        elif k == 'mfma':
            for r in I.wr:
                self.mfma_w[r] = (p, I.passes); self.valu_w.pop(r, None); self.trans_w.pop(r, None)
            for r in I.srcC: self.mfma_c[r] = (p, I.passes)
        elif k in ('vmem', 'ds'):
            for r in I.wr:
                self.valu_w.pop(r, None); self.mfma_w.pop(r, None); self.trans_w.pop(r, None)
            if I.wide_store:
                for r in I.data: self.store_d[r] = p
        elif k in ('salu', 'smem'):
            for r in I.wr:
                self.vsgpr_w.pop(r, None)
                if r == ('s', 'm0'): self.m0_w = p
        self.pos += I.nops

class Kernel:
    def __init__(self, name):
        self.name = name; self.lines = []; self._lab = 0
        self.nv = 0; self.na = 0; self.ns = 0
    def __call__(self, s):
        for l in s.split('\n'):
            if l.strip(): self.lines.append(l.strip())
    def newlabel(self, base='L'):
        self._lab += 1
        return f"{self.name}_{base}{self._lab}"
    def label(self, l): self.lines.append(l + ':')
    def finalize(self):
        ins = [Ins(l) for l in self.lines]
        out = []; st = HazState()
        for I in ins:
            if I.kind in ('empty', 'directive', 'label'):
                out.append(I); continue
            n = st.need(I)
            while n > 0:
                m = min(n, 16)
                N = Ins(f"s_nop {m-1}"); out.append(N); st.apply(N); n -= m
            out.append(I); st.apply(I)
        labels = {I.label: i for i, I in enumerate(out) if I.kind == 'label'}
        errs = []
        def check_path(seq, tag):
            s = HazState()
            for (I, chk) in seq:
                if I.kind in ('empty', 'directive', 'label'): continue
                n = s.need(I)
                if n > 0 and chk: errs.append(f"{self.name}: hazard on path {tag}: need {n} before '{I.text}'")
                s.apply(I)
        for i, I in enumerate(out):
            if I.kind == 'branch' and I.target in labels:
                t = labels[I.target]
                pre = out[max(0, i - 40):i + 1]
                post = out[t:t + 40]
                check_path([(x, False) for x in pre] + [(x, True) for x in post], f"{I.text}@{i}")
        if errs: raise RuntimeError("\n".join(errs))
        mv = ma = ms = -1
        for I in out:
            for r in I.wr + I.rd:
                if r[0] == 'v': mv = max(mv, r[1])
                elif r[0] == 'a': ma = max(ma, r[1])
                elif r[0] == 's' and isinstance(r[1], int): ms = max(ms, r[1])
        self.nv, self.na, self.ns = mv + 1, ma + 1, ms + 1
        body = []
        for I in out:
            body.append(I.text if I.kind == 'label' else '  ' + I.text)
        self.ninst = sum(1 for I in out if I.kind not in ('empty', 'directive', 'label'))
        return body
    def text(self):
        body = self.finalize()
        hdr = [f".globl {self.name}", ".p2align 8", f".type {self.name},@function", f"{self.name}:"]
        return "\n".join(hdr + body)
    def desc(self):
        acc = max(4, (self.nv + 3) // 4 * 4)
        nfv = acc + self.na if self.na else max(self.nv, 1)
        return "\n".join([
            ".p2align 6",
            f".amdhsa_kernel {self.name}",
            f"  .amdhsa_next_free_vgpr {nfv}",
            f"  .amdhsa_next_free_sgpr {max(self.ns, 16)}",
            f"  .amdhsa_accum_offset {acc}",
            "  .amdhsa_group_segment_fixed_size 0",
            "  .amdhsa_kernarg_size 120",
            "  .amdhsa_user_sgpr_count 2",
            "  .amdhsa_user_sgpr_kernarg_segment_ptr 1",
            "  .amdhsa_system_sgpr_workgroup_id_x 1",
            ".end_amdhsa_kernel"])
```

```python
from asmlib import Kernel
S=2048; D=512; FH=896; F=1792
A_X=0; A_WSR=8; A_WSI=16; A_WDR=24; A_WDI=32; A_WIN=48; A_WSP=56; A_BSP=64; A_WOUT=72; A_C=80; A_WMOD=88; A_OUT=96; A_DBG=104; A_WS=112
WS_MOD=0
WS_CSBS=0x4000
WS_STAT=0x8000
WS_LN2=0x48000
WS_EO=0x90000
EO_NT=17*1024; EO_CLS=32*EO_NT
WS_PQ=0x2B0000
PQ_TYPE=72*16384
WS_X1=0x4F0000
WS_X1C=0x700000
WS_Z1=0x910000
WS_Z2N=0xC90000
WS_U=0x1010000
WS_SIZE=0x2000000
OOB=0x40000000

def srd(k, dst, ptr, size):
    k(f"s_mov_b32 s{dst}, s{ptr}")
    k(f"s_mov_b32 s{dst+1}, s{ptr+1}")
    k(f"s_mov_b32 s{dst+2}, {hex(size)}")
    k(f"s_mov_b32 s{dst+3}, 0x20000")

def ldptr(k, dst, off):
    k(f"s_load_dwordx2 s[{dst}:{dst+1}], s[0:1], {off}")

def dpp_reduce16(k, regs, op='v_add_f32'):
    for mod in ("quad_perm:[1,0,3,2]", "quad_perm:[2,3,0,1]", "row_half_mirror", "row_mirror"):
        for r in regs:
            k(f"{op} v{r}, v{r}, v{r} {mod} row_mask:0xf bank_mask:0xf")

def dpp_reduce64(k, regs, op='v_add_f32'):
    dpp_reduce16(k, regs, op)
    for r in regs: k(f"{op} v{r}, v{r}, v{r} row_bcast:15 row_mask:0xa bank_mask:0xf")
    for r in regs: k(f"{op} v{r}, v{r}, v{r} row_bcast:31 row_mask:0xc bank_mask:0xf")

def unpack_bf16(k, src, dlo, dhi):
    k(f"v_lshlrev_b32 v{dlo}, 16, v{src}")
    k(f"v_and_b32 v{dhi}, 0xffff0000, v{src}")

def xreduce_16_32(k, regs, tmps):
    for r,t in zip(regs,tmps): k(f"v_mov_b32 v{t}, v{r}")
    for r,t in zip(regs,tmps): k(f"v_permlane16_swap_b32 v{r}, v{t}")
    for r,t in zip(regs,tmps): k(f"v_add_f32 v{r}, v{r}, v{t}")
    for r,t in zip(regs,tmps): k(f"v_mov_b32 v{t}, v{r}")
    for r,t in zip(regs,tmps): k(f"v_permlane32_swap_b32 v{r}, v{t}")
    for r,t in zip(regs,tmps): k(f"v_add_f32 v{r}, v{r}, v{t}")

def pipeline(k, steps, read, compute, nreads, depth, nbuf):
    n=len(steps)
    for a in range(min(depth,n)): read(steps[a], a % nbuf)
    for a in range(n):
        if a+depth<n: read(steps[a+depth], (a+depth)%nbuf)
        ahead=min(n-1, a+depth)-a
        cnt=ahead*nreads
        assert cnt<=15, cnt
        k(f"s_waitcnt lgkmcnt({cnt})")
        compute(steps[a], a % nbuf)

def gemv64(k, nw, rows_per_lane, acc_sets, lds_reduce=True):
    pass

class VM:
    def __init__(self,k): self.k=k; self.q=[]
    def op(self,text,tag):
        self.k(text); self.q.append(tag)
    def wait(self,*tags):
        last=-1
        for n,t in enumerate(self.q):
            if t in tags: last=n
        if last<0: return
        cnt=len(self.q)-1-last
        assert cnt<=63
        self.k(f"s_waitcnt vmcnt({cnt})")
        self.q=self.q[last+1:]
    def maxcheck(self): assert len(self.q)<=63, len(self.q)

def decode_rbj(k):
    k("s_and_b32 s28, s2, 7")
    k("s_lshr_b32 s29, s2, 3")
    k("s_lshr_b32 s30, s28, 1")
    k("s_lshl_b32 s30, s30, 3")
    k("s_lshr_b32 s31, s29, 2")
    k("s_add_u32 s30, s30, s31")
    k("s_and_b32 s31, s28, 1")
    k("s_lshl_b32 s31, s31, 2")
    k("s_and_b32 s32, s29, 3")
    k("s_add_u32 s31, s31, s32")
```

```python
from common import *

NFOLD=65; NMOD=48
K1_GRID=NFOLD+NMOD
K1_LDS=4*9216

def gen_k1():
    k=Kernel("k1_kernel")
    k(f"s_cmp_ge_u32 s2, {K1_GRID}")
    k("s_cbranch_scc1 k1_end")
    ldptr(k,4,A_X); ldptr(k,6,A_WS); ldptr(k,24,A_C); ldptr(k,26,A_WMOD)
    k("v_and_b32 v1, 63, v0")
    k("v_lshrrev_b32 v2, 6, v0")
    k("s_nop 0")
    k("v_readfirstlane_b32 s3, v2")
    k("s_waitcnt lgkmcnt(0)")
    srd(k,8,4,S*D*2)
    srd(k,12,6,WS_SIZE)
    srd(k,16,26,512*3072*2)
    srd(k,20,24,1024)
    k("s_cmp_ge_u32 s2, 32")
    k("s_cbranch_scc1 k1_nozero")
    k("v_mov_b32 v4, 0\nv_mov_b32 v5, 0\nv_mov_b32 v6, 0\nv_mov_b32 v7, 0")
    k("v_lshlrev_b32 v3, 4, v0")
    k("s_lshl_b32 s28, s2, 13")
    k(f"s_add_u32 s28, s28, {WS_STAT}")
    k("buffer_store_dwordx4 v[4:7], v3, s[12:15], s28 offen")
    k.label("k1_nozero")
    k(f"s_cmp_ge_u32 s2, {NFOLD}")
    k("s_cbranch_scc1 k1_mod")
    k("s_lshl_b32 s28, s2, 3")
    k("s_add_u32 s28, s28, s3")
    k("s_sub_u32 s29, 2048, s28")
    k("s_and_b32 s29, s29, 2047")
    k("s_sub_u32 s30, 1024, s28")
    k("s_add_u32 s31, s28, 1024")
    k("s_lshl_b32 s32, s28, 10")
    k("s_lshl_b32 s29, s29, 10")
    k("s_lshl_b32 s30, s30, 10")
    k("s_lshl_b32 s31, s31, 10")
    k("v_lshlrev_b32 v2, 4, v1")
    k("buffer_load_dwordx4 v[8:11], v2, s[8:11], s32 offen")
    k("buffer_load_dwordx4 v[12:15], v2, s[8:11], s29 offen")
    k("buffer_load_dwordx4 v[16:19], v2, s[8:11], s30 offen")
    k("buffer_load_dwordx4 v[20:23], v2, s[8:11], s31 offen")
    k("s_mov_b32 s33, 1.0")
    k("s_cmp_eq_u32 s28, 0")
    k("s_cselect_b32 s33, 0.5, s33")
    k("s_cmp_eq_u32 s28, 512")
    k("s_cselect_b32 s33, 0.5, s33")
    k("s_cmp_gt_u32 s28, 512")
    k("s_cselect_b32 s33, 0, s33")
    k("v_mov_b32 v100, 0x3b000000")
    k("v_mov_b32 v101, 0x3727c5ac")
    F0=24
    for r in range(4):
        k(f"s_waitcnt vmcnt({3-r})")
        for j in range(4):
            unpack_bf16(k, 8+4*r+j, F0+8*r+2*j, F0+8*r+2*j+1)
    SM=56
    for r in range(4):
        k(f"v_add_f32 v{SM+r}, v{F0+8*r}, v{F0+8*r+1}")
    for e in range(2,8):
        for r in range(4):
            k(f"v_add_f32 v{SM+r}, v{SM+r}, v{F0+8*r+e}")
    dpp_reduce64(k,[SM+r for r in range(4)])
    for r in range(4): k(f"v_readlane_b32 s{34+r}, v{SM+r}, 63")
    for r in range(4): k(f"v_mul_f32 v{60+r}, s{34+r}, v100")
    for e in range(8):
        for r in range(4):
            k(f"v_sub_f32 v{F0+8*r+e}, v{F0+8*r+e}, v{60+r}")
    for r in range(4): k(f"v_mul_f32 v{SM+r}, v{F0+8*r}, v{F0+8*r}")
    for e in range(1,8):
        for r in range(4):
            k(f"v_fmac_f32 v{SM+r}, v{F0+8*r+e}, v{F0+8*r+e}")
    dpp_reduce64(k,[SM+r for r in range(4)])
    for r in range(4): k(f"v_readlane_b32 s{34+r}, v{SM+r}, 63")
    for r in range(4): k(f"v_fma_f32 v{60+r}, s{34+r}, v100, v101")
    for r in range(4): k(f"v_rsq_f32 v{60+r}, v{60+r}")
    for r in range(4): k(f"v_mul_f32 v{60+r}, s33, v{60+r}")
    O=64
    for e in range(8):
        a=F0+e; b=F0+8+e; c=F0+16+e; d=F0+24+e
        k(f"v_mul_f32 v{a}, v{a}, v60")
        k(f"v_mul_f32 v{c}, v{c}, v62")
        k(f"v_fma_f32 v96, v{b}, v61, v{a}")
        k(f"v_fma_f32 v97, -v{b}, v61, v{a}")
        k(f"v_fma_f32 v98, v{d}, v63, v{c}")
        k(f"v_fma_f32 v99, v{d}, v63, -v{c}")
        k(f"v_add_f32 v{O+e}, v96, v98")
        k(f"v_sub_f32 v{O+8+e}, v96, v98")
        k(f"v_add_f32 v{O+16+e}, v97, v99")
        k(f"v_sub_f32 v{O+24+e}, v97, v99")
    k("v_mul_u32_u24 v3, 144, v1")
    k("s_lshl_b32 s38, s3, 1")
    k("v_add_u32 v3, s38, v3")
    for c in range(4):
        for e in range(0,8,2):
            p=F0+4*c+e//2
            k(f"v_cvt_pk_bf16_f32 v{p}, v{O+8*c+e}, v{O+8*c+e+1}")
    for c in range(4):
        for e in range(0,8,2):
            p=F0+4*c+e//2
            k(f"ds_write_b16 v3, v{p} offset:{c*9216+e*16}")
            k(f"ds_write_b16_d16_hi v3, v{p} offset:{c*9216+(e+1)*16}")
    k("s_waitcnt lgkmcnt(0)")
    k("s_barrier")
    k("v_lshrrev_b32 v4, 3, v0")
    k("v_mul_u32_u24 v4, 144, v4")
    k("v_and_b32 v5, 7, v0")
    k("v_lshl_add_u32 v4, v5, 4, v4")
    for c in range(4):
        k(f"ds_read_b128 v[{64+4*c}:{67+4*c}], v4 offset:{c*9216}")
    k("v_lshrrev_b32 v5, 4, v0")
    k(f"v_mul_u32_u24 v5, {EO_NT}, v5")
    k("v_and_b32 v6, 15, v0")
    k("v_lshl_add_u32 v5, v6, 4, v5")
    k("s_lshr_b32 s38, s2, 2")
    k("s_lshl_b32 s38, s38, 10")
    k("s_and_b32 s39, s2, 3")
    k("s_lshl_b32 s39, s39, 8")
    k("s_add_u32 s38, s38, s39")
    k(f"s_add_u32 s38, s38, {WS_EO}")
    for c in range(4):
        k(f"s_waitcnt lgkmcnt({3-c})")
        k(f"buffer_store_dwordx4 v[{64+4*c}:{67+4*c}], v5, s[12:15], s38 offen")
        if c<3: k(f"s_add_u32 s38, s38, {EO_CLS}")
    k("s_cmp_lg_u32 s2, 64")
    k("s_cbranch_scc1 k1_end")
    k("v_mov_b32 v8, 0\nv_mov_b32 v9, 0\nv_mov_b32 v10, 0\nv_mov_b32 v11, 0")
    k(f"s_sub_u32 s38, s38, {3*EO_CLS}")
    for c in range(4):
        for q in range(1,4):
            k(f"buffer_store_dwordx4 v[8:11], v5, s[12:15], s38 offen offset:{q*256}")
        if c<3: k(f"s_add_u32 s38, s38, {EO_CLS}")
    k("s_branch k1_end")
    k.label("k1_mod")
    k(f"s_sub_u32 s28, s2, {NFOLD}")
    k("v_and_b32 v2, 7, v1")
    k("v_lshrrev_b32 v3, 3, v1")
    k("s_lshl_b32 s29, s3, 6")
    k("v_lshl_add_u32 v4, v3, 3, s29")
    k("v_lshlrev_b32 v5, 1, v4")
    k("buffer_load_dwordx4 v[8:11], v5, s[20:23], 0 offen")
    k("s_mov_b32 s30, 6144")
    k("v_mul_lo_u32 v6, v4, s30")
    k("v_lshl_add_u32 v6, v2, 4, v6")
    k("s_lshl_b32 s31, s28, 7")
    for i in range(8):
        k(f"buffer_load_dwordx4 v[{16+4*i}:{19+4*i}], v6, s[16:19], s31 offen")
        if i<7: k("s_add_u32 s31, s31, 6144")
    k("s_waitcnt vmcnt(8)")
    for j in range(4): unpack_bf16(k, 8+j, 48+2*j, 49+2*j)
    k("s_mov_b32 s32, 0xbfb8aa3b")
    for i in range(8): k(f"v_mul_f32 v{56+i}, s32, v{48+i}")
    for i in range(8): k(f"v_exp_f32 v{56+i}, v{56+i}")
    for i in range(8): k(f"v_add_f32 v{56+i}, 1.0, v{56+i}")
    for i in range(8): k(f"v_rcp_f32 v{56+i}, v{56+i}")
    for i in range(8): k(f"v_mul_f32 v{48+i}, v{48+i}, v{56+i}")
    for i in range(0,8,2): k(f"v_cvt_pk_bf16_f32 v{56+i//2}, v{48+i}, v{49+i}")
    for j in range(4): unpack_bf16(k, 56+j, 48+2*j, 49+2*j)
    for i in range(8):
        k(f"s_waitcnt vmcnt({7-i})")
        for j in range(4): unpack_bf16(k, 16+4*i+j, 72+2*j, 73+2*j)
        for c in range(8):
            if i==0: k(f"v_mul_f32 v{64+c}, v{72+c}, v48")
            else: k(f"v_fmac_f32 v{64+c}, v{72+c}, v{48+i}")
    for c in range(8): k(f"v_add_f32 v{64+c}, v{64+c}, v{64+c} row_ror:8 row_mask:0xf bank_mask:0xf")
    xreduce_16_32(k,[64+c for c in range(8)],[72+c for c in range(8)])
    k("v_lshlrev_b32 v7, 5, v2")
    k("s_lshl_b32 s33, s3, 8")
    k("v_add_u32 v7, s33, v7")
    k("v_cmp_gt_u32 vcc, 8, v1")
    k("s_and_saveexec_b64 s[34:35], vcc")
    k("ds_write_b128 v7, v[64:67]")
    k("ds_write_b128 v7, v[68:71] offset:16")
    k("s_mov_b64 exec, s[34:35]")
    k("s_waitcnt lgkmcnt(0)")
    k("s_barrier")
    k("s_cmp_lg_u32 s3, 0")
    k("s_cbranch_scc1 k1_end")
    k("v_lshlrev_b32 v7, 2, v1")
    for w in range(8): k(f"ds_read_b32 v{64+w}, v7 offset:{w*256}")
    k("s_waitcnt lgkmcnt(0)")
    for w in range(1,8): k(f"v_add_f32 v64, v64, v{64+w}")
    k("v_cvt_pk_bf16_f32 v64, v64, v64")
    k("v_lshlrev_b32 v64, 16, v64")
    k("s_lshr_b32 s33, s28, 3")
    k("s_cmp_eq_u32 s33, 1")
    k("s_cbranch_scc1 k1_onep")
    k("s_cmp_eq_u32 s33, 4")
    k("s_cbranch_scc0 k1_modst")
    k.label("k1_onep")
    k("v_add_f32 v64, 1.0, v64")
    k("v_cvt_pk_bf16_f32 v64, v64, v64")
    k("v_lshlrev_b32 v64, 16, v64")
    k.label("k1_modst")
    k("s_lshl_b32 s33, s28, 8")
    k(f"buffer_store_dword v64, v7, s[12:15], s33 offen offset:{WS_MOD}")
    k.label("k1_end")
    k("s_endpgm")
    return k
```

```python
from common import *
K2_MAIN=272; NCS=28
K2_GRID=K2_MAIN+NCS
K2_LDS=9*8192

def gen_k2():
    k=Kernel("k2_kernel")
    k(f"s_cmp_ge_u32 s2, {K2_GRID}")
    k("s_cbranch_scc1 k2_end")
    ldptr(k,4,A_WSR); ldptr(k,6,A_WS); ldptr(k,24,A_WSI); ldptr(k,26,A_WIN)
    k("v_and_b32 v1, 63, v0")
    k("v_lshrrev_b32 v2, 6, v0")
    k("s_nop 0")
    k("v_readfirstlane_b32 s3, v2")
    k(f"s_cmp_ge_u32 s2, {K2_MAIN}")
    k("s_cbranch_scc1 k2_cs")
    k("s_cmp_ge_u32 s2, 256")
    k("s_cbranch_scc1 k2_extra")
    k("s_and_b32 s28, s2, 7")
    k("s_lshr_b32 s29, s2, 3")
    k("s_lshr_b32 s30, s28, 1")
    k("s_and_b32 s31, s28, 1")
    k("s_lshl_b32 s31, s31, 2")
    k("s_lshr_b32 s32, s29, 3")
    k("s_add_u32 s31, s31, s32")
    k("s_and_b32 s32, s29, 7")
    k("s_branch k2_dec")
    k.label("k2_extra")
    k("s_sub_u32 s28, s2, 256")
    k("s_lshr_b32 s30, s28, 3")
    k("s_lshl_b32 s30, s30, 1")
    k("s_mov_b32 s31, 8")
    k("s_and_b32 s32, s28, 7")
    k.label("k2_dec")
    k("s_lshr_b32 s33, s30, 1")
    k("s_and_b32 s34, s30, 1")
    k("s_waitcnt lgkmcnt(0)")
    k("s_cmp_eq_u32 s33, 0")
    k("s_cselect_b32 s4, s4, s24")
    k("s_cselect_b32 s5, s5, s25")
    srd(k,8,4,S*S*2)
    srd(k,12,6,WS_SIZE)
    k("v_lshrrev_b32 v2, 3, v1")
    k("v_and_b32 v3, 7, v1")
    k("v_lshrrev_b32 v4, 1, v2")
    k("v_xor_b32 v5, v3, v4")
    k("v_lshlrev_b32 v5, 4, v5")
    k("v_lshl_add_u32 v5, v2, 13, v5")
    k("v_xor_b32 v6, 64, v5")
    k("v_lshlrev_b32 v7, 4, v1")
    k("v_lshrrev_b32 v8, 4, v1")
    k("v_and_b32 v9, 15, v1")
    k("v_lshlrev_b32 v10, 4, v8")
    k("s_lshl_b32 s35, s32, 8")
    k("s_lshl_b32 s36, s3, 6")
    k("s_add_u32 s35, s35, s36")
    k(f"buffer_load_dwordx4 v[12:15], v10, s[12:15], s35 offen offset:{WS_MOD+2048}")
    k(f"buffer_load_dwordx4 v[16:19], v10, s[12:15], s35 offen offset:{WS_MOD}")
    k("s_lshl_b32 s36, s31, 19")
    k("s_lshl_b32 s37, s3, 17")
    k("s_add_u32 s36, s36, s37")
    k("s_lshl_b32 s37, s34, 12")
    k("s_add_u32 s36, s36, s37")
    k("s_add_u32 s37, s36, 65536")
    k("s_lshl_b32 s38, s3, 11")
    k(f"s_mul_i32 s39, s30, {EO_CLS}")
    k("s_lshl_b32 s40, s32, 2")
    k("s_add_u32 s40, s40, s3")
    k(f"s_mul_i32 s40, s40, {EO_NT}")
    k("s_add_u32 s39, s39, s40")
    k(f"s_add_u32 s39, s39, {WS_EO}")
    BF=32
    for kc in range(9):
        k(f"s_add_u32 m0, s38, {kc*8192}")
        k(f"buffer_load_dwordx4 v5, s[8:11], s36 offen lds")
        k(f"s_add_u32 m0, s38, {kc*8192+1024}")
        k(f"buffer_load_dwordx4 v6, s[8:11], s37 offen lds")
        if kc<8:
            k("s_add_u32 s36, s36, 128"); k("s_add_u32 s37, s37, 128")
        for ks in (2*kc,2*kc+1):
            if ks>16: continue
            k(f"buffer_load_dwordx4 v[{BF+4*ks}:{BF+4*ks+3}], v7, s[12:15], s39 offen offset:{(ks%4)*1024}")
            if ks%4==3: k("s_add_u32 s39, s39, 4096")
    k("v_lshrrev_b32 v20, 1, v9")
    k("v_xor_b32 v20, v20, v8")
    k("v_lshlrev_b32 v20, 4, v20")
    k("v_lshl_add_u32 v20, v9, 7, v20")
    k("v_xor_b32 v21, 64, v20")
    k("v_add_u32 v22, 0x10000, v20")
    WF=100
    ACC=148
    def rd(ks,buf):
        kc=ks>>1
        for mt in range(4):
            r=WF+16*buf+4*mt
            if kc<8: k(f"ds_read_b128 v[{r}:{r+3}], v{20+(ks&1)} offset:{kc*8192+mt*2048}")
            else: k(f"ds_read_b128 v[{r}:{r+3}], v22 offset:{mt*2048}")
    def cp(ks,buf):
        for mt in range(4):
            r=WF+16*buf+4*mt; a=ACC+4*mt
            c = "0" if ks==0 else f"v[{a}:{a+3}]"
            k(f"v_mfma_f32_16x16x32_bf16 v[{a}:{a+3}], v[{BF+4*ks}:{BF+4*ks+3}], v[{r}:{r+3}], {c}")
    for st,(vm,steps) in enumerate([(23,range(0,6)),(11,range(6,12)),(0,range(12,17))]):
        k(f"s_waitcnt vmcnt({vm})")
        k("s_barrier")
        pipeline(k,list(steps),rd,cp,4,2,3)
    k("s_or_b32 s40, s30, s31")
    k("s_cmp_eq_u32 s40, 0")
    k("s_cselect_b32 s40, 0x45000000, 0")
    k("v_mov_b32 v23, s40")
    k("v_cmp_eq_u32 vcc, 0, v9")
    k("v_cndmask_b32 v23, 0, v23, vcc")
    for j in range(4): k(f"v_mul_f32 v{16+j}, v{16+j}, v23")
    for mt in range(4):
        for j in range(4):
            a=ACC+4*mt+j
            if mt==0: k(f"v_fma_f32 v{a}, v{a}, v{12+j}, v{16+j}")
            else: k(f"v_mul_f32 v{a}, v{a}, v{12+j}")
    PK=24
    for mt in range(4):
        k(f"v_cvt_pk_bf16_f32 v{PK+2*mt}, v{ACC+4*mt}, v{ACC+4*mt+1}")
        k(f"v_cvt_pk_bf16_f32 v{PK+2*mt+1}, v{ACC+4*mt+2}, v{ACC+4*mt+3}")
    for pr in range(2):
        k(f"v_permlane16_swap_b32 v{PK+4*pr}, v{PK+4*pr+2}")
        k(f"v_permlane16_swap_b32 v{PK+4*pr+1}, v{PK+4*pr+3}")
    k("v_and_b32 v10, 1, v8")
    k("v_lshlrev_b32 v10, 14, v10")
    k("v_lshrrev_b32 v11, 1, v8")
    k("v_lshl_add_u32 v11, v11, 4, v9")
    k("v_lshl_add_u32 v10, v11, 4, v10")
    k(f"s_mul_i32 s40, s33, {PQ_TYPE}")
    k("s_mul_i32 s41, s34, 36")
    k("s_lshl_b32 s42, s31, 2")
    k("s_add_u32 s41, s41, s42")
    k("s_lshl_b32 s41, s41, 14")
    k("s_add_u32 s40, s40, s41")
    k("s_lshl_b32 s41, s32, 11")
    k("s_add_u32 s40, s40, s41")
    k("s_lshr_b32 s41, s3, 1")
    k("s_lshl_b32 s41, s41, 10")
    k("s_add_u32 s40, s40, s41")
    k("s_and_b32 s41, s3, 1")
    k("s_lshl_b32 s41, s41, 9")
    k("s_add_u32 s40, s40, s41")
    k(f"s_add_u32 s40, s40, {WS_PQ}")
    k(f"buffer_store_dwordx4 v[{PK}:{PK+3}], v10, s[12:15], s40 offen")
    k("s_add_u32 s40, s40, 32768")
    k(f"buffer_store_dwordx4 v[{PK+4}:{PK+7}], v10, s[12:15], s40 offen")
    k("s_branch k2_end")
    k.label("k2_cs")
    k("s_waitcnt lgkmcnt(0)")
    srd(k,16,26,D*F*2)
    srd(k,12,6,WS_SIZE)
    k(f"s_sub_u32 s28, s2, {K2_MAIN}")
    k("v_and_b32 v2, 7, v1")
    k("v_lshrrev_b32 v3, 3, v1")
    k("s_lshl_b32 s29, s3, 7")
    k("v_lshl_add_u32 v4, v3, 4, s29")
    k("v_lshlrev_b32 v5, 2, v4")
    k(f"s_mov_b32 s33, {WS_MOD+3*2048}")
    for j in range(4): k(f"buffer_load_dwordx4 v[{8+4*j}:{11+4*j}], v5, s[12:15], s33 offen offset:{2048+16*j}")
    for j in range(4): k(f"buffer_load_dwordx4 v[{24+4*j}:{27+4*j}], v5, s[12:15], s33 offen offset:{16*j}")
    k("s_mov_b32 s30, 3584")
    k("v_mul_lo_u32 v6, v4, s30")
    k("v_lshl_add_u32 v6, v2, 4, v6")
    k("s_lshl_b32 s31, s28, 7")
    for i in range(16):
        k(f"buffer_load_dwordx4 v[{40+4*i}:{43+4*i}], v6, s[16:19], s31 offen")
        if i<15: k("s_add_u32 s31, s31, 3584")
    A1=104; A2=112; T=120
    for i in range(16):
        k(f"s_waitcnt vmcnt({15-i})")
        for j in range(4): unpack_bf16(k, 40+4*i+j, T+2*j, T+2*j+1)
        for c in range(8):
            if i==0:
                k(f"v_mul_f32 v{A1+c}, v{T+c}, v{8+i}")
                k(f"v_mul_f32 v{A2+c}, v{T+c}, v{24+i}")
            else:
                k(f"v_fmac_f32 v{A1+c}, v{T+c}, v{8+i}")
                k(f"v_fmac_f32 v{A2+c}, v{T+c}, v{24+i}")
    regs=[A1+c for c in range(16)]
    for r in regs: k(f"v_add_f32 v{r}, v{r}, v{r} row_ror:8 row_mask:0xf bank_mask:0xf")
    xreduce_16_32(k,regs,[40+c for c in range(16)])
    k("v_lshlrev_b32 v7, 5, v2")
    k("s_lshl_b32 s33, s3, 9")
    k("v_add_u32 v7, s33, v7")
    k("v_cmp_gt_u32 vcc, 8, v1")
    k("s_and_saveexec_b64 s[34:35], vcc")
    k(f"ds_write_b128 v7, v[{A1}:{A1+3}]")
    k(f"ds_write_b128 v7, v[{A1+4}:{A1+7}] offset:16")
    k(f"ds_write_b128 v7, v[{A2}:{A2+3}] offset:256")
    k(f"ds_write_b128 v7, v[{A2+4}:{A2+7}] offset:272")
    k("s_mov_b64 exec, s[34:35]")
    k("s_waitcnt lgkmcnt(0)")
    k("s_barrier")
    k("s_cmp_ge_u32 s3, 2")
    k("s_cbranch_scc1 k2_end")
    k("v_lshlrev_b32 v7, 2, v1")
    k("s_lshl_b32 s33, s3, 8")
    k("v_add_u32 v8, s33, v7")
    for w in range(4): k(f"ds_read_b32 v{64+w}, v8 offset:{w*512}")
    k("s_waitcnt lgkmcnt(0)")
    for w in range(1,4): k(f"v_add_f32 v64, v64, v{64+w}")
    k(f"s_mul_i32 s33, s3, {F*4}")
    k("s_lshl_b32 s34, s28, 8")
    k("s_add_u32 s33, s33, s34")
    k(f"s_add_u32 s33, s33, {WS_CSBS}")
    k("buffer_store_dword v64, v7, s[12:15], s33 offen")
    k.label("k2_end")
    k("s_endpgm")
    return k
```

```python
from common import *
K3_GRID=272
K3_LDS=65536

def gen_k3():
    k=Kernel("k3_kernel")
    k(f"s_cmp_ge_u32 s2, {K3_GRID}")
    k("s_cbranch_scc1 k3_end")
    ldptr(k,4,A_WDR); ldptr(k,6,A_WS); ldptr(k,24,A_WDI); ldptr(k,26,A_X)
    k("v_and_b32 v1, 63, v0")
    k("v_lshrrev_b32 v2, 6, v0")
    k("s_nop 0")
    k("v_readfirstlane_b32 s3, v2")
    k("s_cmp_ge_u32 s2, 256")
    k("s_cbranch_scc1 k3_extra")
    k("s_and_b32 s28, s2, 7")
    k("s_lshr_b32 s29, s2, 3")
    k("s_lshr_b32 s30, s28, 1")
    k("s_lshl_b32 s30, s30, 2")
    k("s_lshr_b32 s31, s29, 3")
    k("s_add_u32 s30, s30, s31")
    k("s_and_b32 s31, s28, 1")
    k("s_lshl_b32 s31, s31, 3")
    k("s_and_b32 s32, s29, 7")
    k("s_add_u32 s31, s31, s32")
    k("s_branch k3_dec")
    k.label("k3_extra")
    k("s_mov_b32 s30, 16")
    k("s_sub_u32 s31, s2, 256")
    k.label("k3_dec")
    k("s_and_b32 s33, s3, 1")
    k("s_lshr_b32 s34, s3, 1")
    k("s_waitcnt lgkmcnt(0)")
    srd(k,8,4,D*D*2)
    srd(k,16,24,D*D*2)
    srd(k,12,6,WS_SIZE)
    srd(k,20,26,S*D*2)
    k("v_lshrrev_b32 v8, 4, v1")
    k("v_mov_b32 v224, v8")
    k("v_and_b32 v225, 15, v1")
    k("s_lshl_b32 s35, s30, 1")
    k("s_add_u32 s35, s35, s34")
    k("s_lshl_b32 s35, s35, 5")
    k("s_add_u32 s35, s35, s33")
    k("v_lshl_add_u32 v226, v225, 1, s35")
    k("v_sub_u32 v227, 2048, v226")
    k("s_lshl_b32 s36, s31, 6")
    k("v_lshl_add_u32 v228, v224, 4, s36")
    k("v_lshl_add_u32 v229, v226, 10, v228")
    k("v_lshl_add_u32 v230, v227, 10, v228")
    k("buffer_load_dwordx4 v[8:11], v229, s[20:23], 0 offen")
    k("buffer_load_dwordx4 v[12:15], v230, s[20:23], 0 offen")
    k("v_lshlrev_b32 v231, 1, v228")
    k(f"s_mov_b32 s37, {WS_MOD+2*2048}")
    k("buffer_load_dwordx4 v[16:19], v231, s[12:15], s37 offen")
    k("buffer_load_dwordx4 v[20:23], v231, s[12:15], s37 offen offset:16")
    k(f"s_mov_b32 s37, {WS_MOD+4*2048}")
    k("buffer_load_dwordx4 v[24:27], v231, s[12:15], s37 offen")
    k("buffer_load_dwordx4 v[28:31], v231, s[12:15], s37 offen offset:16")
    k("v_lshrrev_b32 v2, 3, v1")
    k("v_and_b32 v3, 7, v1")
    k("v_bfe_u32 v4, v2, 1, 1")
    k("s_lshl_b32 s37, s3, 1")
    k("v_add_u32 v4, s37, v4")
    k("v_xor_b32 v5, v3, v4")
    k("v_lshlrev_b32 v5, 4, v5")
    k("v_lshl_add_u32 v5, v2, 10, v5")
    k("v_lshlrev_b32 v7, 4, v1")
    k("s_lshl_b32 s38, s31, 15")
    k("s_lshl_b32 s39, s3, 13")
    k("s_add_u32 s38, s38, s39")
    k("s_lshl_b32 s39, s3, 10")
    k("s_mul_i32 s40, s33, 36")
    k("s_lshl_b32 s41, s30, 1")
    k("s_add_u32 s40, s40, s41")
    k("s_add_u32 s40, s40, s34")
    k("s_lshl_b32 s40, s40, 14")
    k(f"s_add_u32 s40, s40, {WS_PQ}")
    k(f"s_add_u32 s41, s40, {PQ_TYPE}")
    PF=32; QF=96
    for kc in range(8):
        k(f"s_add_u32 m0, s39, {kc*4096}")
        k("buffer_load_dwordx4 v5, s[8:11], s38 offen lds")
        k(f"s_add_u32 m0, s39, {32768+kc*4096}")
        k("buffer_load_dwordx4 v5, s[16:19], s38 offen lds")
        if kc<7: k("s_add_u32 s38, s38, 128")
        for ks in (2*kc,2*kc+1):
            k(f"buffer_load_dwordx4 v[{PF+4*ks}:{PF+4*ks+3}], v7, s[12:15], s40 offen offset:{(ks%4)*1024}")
            k(f"buffer_load_dwordx4 v[{QF+4*ks}:{QF+4*ks+3}], v7, s[12:15], s41 offen offset:{(ks%4)*1024}")
            if ks%4==3:
                k("s_add_u32 s40, s40, 4096"); k("s_add_u32 s41, s41, 4096")
    k("v_lshrrev_b32 v2, 2, v225")
    k("v_and_b32 v3, 3, v225")
    k("v_lshl_add_u32 v2, v2, 3, v3")
    k("v_lshrrev_b32 v3, 1, v225")
    k("v_xor_b32 v3, v3, v224")
    k("v_lshlrev_b32 v3, 4, v3")
    k("v_lshl_add_u32 v232, v2, 7, v3")
    k("v_xor_b32 v233, 64, v232")
    WF=160; ACC=208
    def rd(ks,buf):
        kc=ks>>1
        for m in range(2):
            for h in range(2):
                r=WF+16*buf+8*m+4*h
                k(f"ds_read_b128 v[{r}:{r+3}], v{232+(ks&1)} offset:{m*32768+kc*4096+h*512}")
    def cp(ks,buf):
        for m in range(2):
            for h in range(2):
                r=WF+16*buf+8*m+4*h; a=ACC+8*m+4*h
                b=(PF if m==0 else QF)+4*ks
                c="0" if ks==0 else f"v[{a}:{a+3}]"
                k(f"v_mfma_f32_16x16x32_bf16 v[{a}:{a+3}], v[{r}:{r+3}], v[{b}:{b+3}], {c}")
    for vm,steps in [(24,range(0,8)),(0,range(8,16))]:
        k(f"s_waitcnt vmcnt({vm})")
        k("s_barrier")
        pipeline(k,list(steps),rd,cp,4,2,3)
    Y1=32; Y2=40
    for e in range(8):
        k(f"v_sub_f32 v{Y1+e}, v{ACC+e}, v{ACC+8+e}")
        k(f"v_add_f32 v{Y2+e}, v{ACC+e}, v{ACC+8+e}")
    X1=48; X2=56
    for j in range(4):
        unpack_bf16(k, 8+j, X1+2*j, X1+2*j+1)
        unpack_bf16(k, 12+j, X2+2*j, X2+2*j+1)
    for e in range(8):
        k(f"v_fmac_f32 v{X1+e}, v{16+e}, v{Y1+e}")
        k(f"v_fmac_f32 v{X2+e}, v{16+e}, v{Y2+e}")
    P1=64; P2=68
    for j in range(4):
        k(f"v_cvt_pk_bf16_f32 v{P1+j}, v{X1+2*j}, v{X1+2*j+1}")
        k(f"v_cvt_pk_bf16_f32 v{P2+j}, v{X2+2*j}, v{X2+2*j+1}")
    k("v_cmp_ge_u32 vcc, 1024, v226")
    k(f"v_mov_b32 v234, {hex(OOB)}")
    k("v_cndmask_b32 v229, v234, v229, vcc")
    k("v_add_u32 v235, -1, v226")
    k("v_cmp_gt_u32 vcc, 1023, v235")
    k("v_cndmask_b32 v230, v234, v230, vcc")
    k(f"s_mov_b32 s42, {WS_X1}")
    k(f"buffer_store_dwordx4 v[{P1}:{P1+3}], v229, s[12:15], s42 offen")
    k(f"buffer_store_dwordx4 v[{P2}:{P2+3}], v230, s[12:15], s42 offen")
    for j in range(4):
        unpack_bf16(k, P1+j, X1+2*j, X1+2*j+1)
        unpack_bf16(k, P2+j, X2+2*j, X2+2*j+1)
    for e in range(8):
        k(f"v_mul_f32 v{Y1+e}, v{X1+e}, v{24+e}")
        k(f"v_mul_f32 v{Y2+e}, v{X2+e}, v{24+e}")
    C1=72; C2=76
    for j in range(4):
        k(f"v_cvt_pk_bf16_f32 v{C1+j}, v{Y1+2*j}, v{Y1+2*j+1}")
        k(f"v_cvt_pk_bf16_f32 v{C2+j}, v{Y2+2*j}, v{Y2+2*j+1}")
    k(f"s_mov_b32 s42, {WS_X1C}")
    k(f"buffer_store_dwordx4 v[{C1}:{C1+3}], v229, s[12:15], s42 offen")
    k(f"buffer_store_dwordx4 v[{C2}:{C2+3}], v230, s[12:15], s42 offen")
    k(f"v_add_f32 v80, v{X1}, v{X1+1}")
    k(f"v_mul_f32 v81, v{X1}, v{X1}")
    k(f"v_add_f32 v82, v{X2}, v{X2+1}")
    k(f"v_mul_f32 v83, v{X2}, v{X2}")
    for e in range(1,8):
        if e>=2:
            k(f"v_add_f32 v80, v80, v{X1+e}")
            k(f"v_add_f32 v82, v82, v{X2+e}")
        k(f"v_fmac_f32 v81, v{X1+e}, v{X1+e}")
        k(f"v_fmac_f32 v83, v{X2+e}, v{X2+e}")
    xreduce_16_32(k,[80,81,82,83],[84,85,86,87])
    k("s_lshl_b32 s43, s31, 3")
    k(f"s_add_u32 s43, s43, {WS_LN2}")
    k("v_lshlrev_b32 v88, 7, v226")
    k("v_lshlrev_b32 v89, 7, v227")
    k("v_cmp_ge_u32 vcc, 1024, v226")
    k("v_cndmask_b32 v88, v234, v88, vcc")
    k("v_cmp_gt_u32 vcc, 1023, v235")
    k("v_cndmask_b32 v89, v234, v89, vcc")
    k("v_cmp_eq_u32 vcc, 0, v224")
    k("v_cndmask_b32 v88, v234, v88, vcc")
    k("v_cndmask_b32 v89, v234, v89, vcc")
    k("buffer_store_dwordx2 v[80:81], v88, s[12:15], s43 offen")
    k("buffer_store_dwordx2 v[82:83], v89, s[12:15], s43 offen")
    k.label("k3_end")
    k("s_endpgm")
    return k
```

```python
from common import *
K4_GRID=256
NT=7; NA=4
L_RING=0; L_A=65536; L_LN=131072; L_SCR=131072+512
K4_LDS=L_SCR+4*256
GC0=-2.0*0.7978845608028654*1.4426950408889634
GC1=GC0*0.044715
import struct
def f2u(x): return hex(struct.unpack('<I',struct.pack('<f',x))[0])

def gelu(k, regs, t1, t2):
    n=len(regs)
    for a in range(n): k(f"v_mul_f32 v{t1[a]}, v{regs[a]}, v{regs[a]}")
    for a in range(n): k(f"v_fma_f32 v{t1[a]}, v{t1[a]}, s50, v{t2}")
    for a in range(n): k(f"v_mul_f32 v{t1[a]}, v{t1[a]}, v{regs[a]}")
    for a in range(n): k(f"v_exp_f32 v{t1[a]}, v{t1[a]}")
    for a in range(n): k(f"v_add_f32 v{t1[a]}, 1.0, v{t1[a]}")
    for a in range(n): k(f"v_rcp_f32 v{t1[a]}, v{t1[a]}")
    for a in range(n): k(f"v_mul_f32 v{regs[a]}, v{regs[a]}, v{t1[a]}")

def decode_rbj(k):
    k("s_and_b32 s28, s2, 7")
    k("s_lshr_b32 s29, s2, 3")
    k("s_lshr_b32 s30, s28, 1")
    k("s_lshl_b32 s30, s30, 3")
    k("s_lshr_b32 s31, s29, 2")
    k("s_add_u32 s30, s30, s31")
    k("s_and_b32 s31, s28, 1")
    k("s_lshl_b32 s31, s31, 2")
    k("s_and_b32 s32, s29, 3")
    k("s_add_u32 s31, s31, s32")

def gen_k4():
    k=Kernel("k4_kernel")
    k(f"s_cmp_ge_u32 s2, {K4_GRID}")
    k("s_cbranch_scc1 k4_end")
    ldptr(k,4,A_WIN); ldptr(k,6,A_WS)
    k("v_and_b32 v1, 63, v0")
    k("v_lshrrev_b32 v2, 6, v0")
    k("s_nop 0")
    k("v_readfirstlane_b32 s3, v2")
    decode_rbj(k)
    k("s_lshr_b32 s33, s3, 1")
    k("s_and_b32 s34, s3, 1")
    k("s_waitcnt lgkmcnt(0)")
    srd(k,8,4,D*F*2)
    srd(k,12,6,WS_SIZE)
    Q=2; I=3
    k(f"v_lshrrev_b32 v{Q}, 4, v1")
    k(f"v_and_b32 v{I}, 15, v1")
    k("v_lshrrev_b32 v4, 2, v0")
    k("v_and_b32 v5, 3, v0")
    k("v_lshlrev_b32 v6, 7, v4")
    k("v_lshl_add_u32 v6, v5, 5, v6")
    k("s_lshl_b32 s35, s30, 13")
    k(f"s_add_u32 s35, s35, {WS_LN2}")
    k("buffer_load_dwordx4 v[8:11], v6, s[12:15], s35 offen")
    k("buffer_load_dwordx4 v[12:15], v6, s[12:15], s35 offen offset:16")
    CS2=16; BS2=20; CS1=24; BS1=40
    k("s_lshl_b32 s36, s34, 2")
    k("s_mul_i32 s37, s31, 112")
    k("s_lshl_b32 s38, s36, 4")
    k("s_add_u32 s37, s37, s38")
    k("s_lshl_b32 s38, s37, 2")
    k(f"s_add_u32 s38, s38, {WS_CSBS}")
    k(f"s_add_u32 s39, s38, {FH*4}")
    k(f"v_lshlrev_b32 v6, 2, v{I}")
    k(f"v_lshlrev_b32 v7, 4, v{Q}")
    for nt in range(NA):
        k(f"buffer_load_dword v{CS2+nt}, v6, s[12:15], s39 offen offset:{nt*64}")
    k(f"s_add_u32 s39, s39, {F*4}")
    for nt in range(NA):
        k(f"buffer_load_dword v{BS2+nt}, v6, s[12:15], s39 offen offset:{nt*64}")
    for nt in range(NA):
        k(f"buffer_load_dwordx4 v[{CS1+4*nt}:{CS1+4*nt+3}], v7, s[12:15], s38 offen offset:{nt*64}")
    k(f"s_add_u32 s38, s38, {F*4}")
    for nt in range(NA):
        k(f"buffer_load_dwordx4 v[{BS1+4*nt}:{BS1+4*nt+3}], v7, s[12:15], s38 offen offset:{nt*64}")
    k("v_lshrrev_b32 v4, 3, v1")
    k("v_and_b32 v5, 7, v1")
    k("v_bfe_u32 v6, v4, 1, 1")
    k("s_lshl_b32 s35, s3, 2")
    k("s_and_b32 s35, s35, 7")
    k("v_add_u32 v6, s35, v6")
    k("v_xor_b32 v56, v5, v6")
    k("v_lshlrev_b32 v56, 4, v56")
    k("v_lshl_add_u32 v56, v4, 10, v56")
    k("v_add_u32 v6, 2, v6")
    k("v_xor_b32 v57, v5, v6")
    k("v_lshlrev_b32 v57, 4, v57")
    k("v_lshl_add_u32 v57, v4, 10, v57")
    k("s_lshl_b32 s35, s30, 16")
    k("s_lshl_b32 s36, s3, 14")
    k("s_add_u32 s35, s35, s36")
    k(f"s_add_u32 s35, s35, {WS_X1C}")
    k("s_add_u32 s36, s35, 8192")
    k("s_lshl_b32 s40, s3, 11")
    k(f"s_add_u32 s40, s40, {L_A}")
    for kc in range(8):
        k(f"s_add_u32 m0, s40, {kc*8192}")
        k("buffer_load_dwordx4 v56, s[12:15], s35 offen lds")
        k(f"s_add_u32 m0, s40, {kc*8192+1024}")
        k("buffer_load_dwordx4 v57, s[12:15], s36 offen lds")
        if kc<7:
            k("s_add_u32 s35, s35, 128"); k("s_add_u32 s36, s36, 128")
    k(f"v_and_b32 v4, 3, v{Q}")
    k("s_and_b32 s35, s3, 1")
    k("s_lshl_b32 s36, s35, 3")
    k("s_lshr_b32 s41, s3, 1")
    k("s_lshl_b32 s41, s41, 2")
    k("s_add_u32 s36, s36, s41")
    k("v_add_u32 v5, s36, v4")
    k("s_mov_b32 s41, 3584")
    k("v_mul_lo_u32 v5, v5, s41")
    k("s_lshl_b32 s35, s35, 2")
    k("v_add_u32 v6, s35, v4")
    k("v_lshlrev_b32 v6, 1, v6")
    k(f"v_xor_b32 v6, v6, v{I}")
    k("v_lshl_add_u32 v58, v6, 4, v5")
    k(f"v_mov_b32 v7, {hex(OOB)}")
    k(f"v_cmp_gt_u32 vcc, {2*NT}, v6")
    k("v_cndmask_b32 v58, v7, v58, vcc")
    k("s_mul_i32 s43, s31, 224")
    k(f"s_add_u32 s42, s43, {FH*2}")
    k("s_lshl_b32 s44, s3, 10")
    k("s_mov_b32 s45, 0")
    k("s_mov_b32 s46, 0")
    def issue_group():
        for kk in range(2):
            for tt in range(2):
                k(f"s_add_u32 s47, s42, {(32*kk+16*tt)*3584}")
                k("s_add_u32 s48, s45, s44")
                k(f"s_add_u32 m0, s48, {L_RING+kk*8192+tt*4096}")
                k("buffer_load_dwordx4 v58, s[8:11], s47 offen lds")
        k(f"s_add_u32 s42, s42, {64*3584}")
        k("s_add_u32 s46, s46, 1")
        k("s_cmp_eq_u32 s46, 8")
        k("s_cselect_b32 s42, s43, s42")
        k("s_add_u32 s45, s45, 16384")
        k("s_and_b32 s45, s45, 0xffff")
    for g in range(3): issue_group()
    k("s_waitcnt vmcnt(44)")
    k("v_add_f32 v8, v8, v10\nv_add_f32 v9, v9, v11\nv_add_f32 v12, v12, v14\nv_add_f32 v13, v13, v15")
    k("v_add_f32 v8, v8, v12\nv_add_f32 v9, v9, v13")
    for mod in ("quad_perm:[1,0,3,2]","quad_perm:[2,3,0,1]"):
        k(f"v_add_f32 v8, v8, v8 {mod} row_mask:0xf bank_mask:0xf")
        k(f"v_add_f32 v9, v9, v9 {mod} row_mask:0xf bank_mask:0xf")
    k("v_mul_f32 v8, 0x3b000000, v8")
    k("v_mul_f32 v9, 0x3b000000, v9")
    k("v_fma_f32 v9, -v8, v8, v9")
    k("v_max_f32 v9, 0, v9")
    k("v_add_f32 v9, 0x3727c5ac, v9")
    k("v_rsq_f32 v10, v9")
    k("v_mul_f32 v11, v10, v8")
    k("v_lshrrev_b32 v4, 2, v0")
    k("v_lshlrev_b32 v4, 3, v4")
    k(f"v_add_u32 v4, {L_LN}, v4")
    k("v_and_b32 v5, 3, v0")
    k("v_cmp_eq_u32 vcc, 0, v5")
    k("s_and_saveexec_b64 s[52:53], vcc")
    k("ds_write_b64 v4, v[10:11]")
    k("s_mov_b64 exec, s[52:53]")
    k(f"v_lshrrev_b32 v4, 2, v{I}")
    k(f"v_and_b32 v5, 3, v{I}")
    k("v_lshl_add_u32 v4, v4, 3, v5")
    k("s_lshl_b32 s35, s33, 5")
    k("v_add_u32 v4, s35, v4")
    k(f"v_lshrrev_b32 v5, 1, v{I}")
    k(f"v_xor_b32 v5, v5, v{Q}")
    k("v_lshlrev_b32 v5, 4, v5")
    k("v_lshl_add_u32 v59, v4, 7, v5")
    k(f"v_add_u32 v59, {L_A}, v59")
    k("v_bfe_u32 v4, v1, 2, 2")
    k(f"v_and_b32 v5, 1, v{Q}")
    k("v_lshl_add_u32 v4, v5, 2, v4")
    k(f"v_lshrrev_b32 v5, 1, v{Q}")
    k("v_lshl_add_u32 v5, v5, 4, v4")
    k("v_lshlrev_b32 v5, 8, v5")
    k("v_lshl_add_u32 v5, v4, 5, v5")
    k("v_and_b32 v6, 3, v1")
    k("v_lshl_add_u32 v5, v6, 3, v5")
    k("s_lshl_b32 s35, s34, 7")
    k("v_xor_b32 v5, s35, v5")
    VB=60
    for nt in range(NA): k(f"v_xor_b32 v{VB+nt}, {nt*32}, v5")
    k(f"s_mov_b32 s50, {f2u(GC1)}")
    k(f"v_mov_b32 v64, {f2u(GC0)}")
    k("s_cmp_eq_u32 s34, 0")
    k("s_cbranch_scc0 k4_clsB")
    body(k,"A",NA)
    k("s_branch k4_end")
    k.label("k4_clsB")
    body(k,"B",NT-NA)
    k.label("k4_end")
    k("s_endpgm")
    return k

def body(k,cls,n):
    Q=2; I=3; VB=60; VA=66
    CS2=16; BS2=20; CS1=24; BS1=40
    AF=68
    BFR=84
    ACC=116
    ZP=148
    T=164
    def issue_group():
        for kk in range(2):
            for tt in range(2):
                k(f"s_add_u32 s47, s42, {(32*kk+16*tt)*3584}")
                k("s_add_u32 s48, s45, s44")
                k(f"s_add_u32 m0, s48, {L_RING+kk*8192+tt*4096}")
                k("buffer_load_dwordx4 v58, s[8:11], s47 offen lds")
        k(f"s_add_u32 s42, s42, {64*3584}")
        k("s_add_u32 s46, s46, 1")
        k("s_cmp_eq_u32 s46, 8")
        k("s_cselect_b32 s42, s43, s42")
        k("s_add_u32 s45, s45, 16384")
        k("s_and_b32 s45, s45, 0xffff")
    def reads(kk):
        for h in range(2):
            r=AF+8*kk+4*h
            k(f"ds_read_b128 v[{r}:{r+3}], v{VA+kk} offset:{h*512}")
        for nt in range(n):
            r=BFR+16*kk+4*nt
            k(f"ds_read_b64_tr_b16 v[{r}:{r+1}], v{VB+nt} offset:{kk*8192}")
            k(f"ds_read_b64_tr_b16 v[{r+2}:{r+3}], v{VB+nt} offset:{kk*8192+2048}")
    def mfmas(kk,phase):
        for nt in range(n):
            for h in range(2):
                a=ACC+16*h+4*nt; ra=AF+8*kk+4*h; rb=BFR+16*kk+4*nt
                if phase==2: k(f"v_mfma_f32_16x16x32_bf16 v[{a}:{a+3}], v[{ra}:{ra+3}], v[{rb}:{rb+3}], v[{a}:{a+3}]")
                else:        k(f"v_mfma_f32_16x16x32_bf16 v[{a}:{a+3}], v[{rb}:{rb+3}], v[{ra}:{ra+3}], v[{a}:{a+3}]")
    def loop(phase):
        for r in range(32): k(f"v_mov_b32 v{ACC+r}, 0")
        k(f"v_mov_b32 v{VA}, v59")
        k(f"v_xor_b32 v{VA+1}, 64, v59")
        k("s_mov_b32 s49, 8")
        L=k.newlabel("loop")
        k.label(L)
        k("s_waitcnt vmcnt(8)")
        k("s_barrier")
        reads(0)
        issue_group()
        k("s_waitcnt lgkmcnt(0)")
        reads(1)
        mfmas(0,phase)
        k("s_waitcnt lgkmcnt(0)")
        mfmas(1,phase)
        k(f"v_add_u32 v{VA}, 8192, v{VA}")
        k(f"v_add_u32 v{VA+1}, 8192, v{VA+1}")
        for nt in range(n):
            k(f"v_add_u32 v{VB+nt}, 16384, v{VB+nt}")
        for nt in range(n):
            k(f"v_and_b32 v{VB+nt}, 0xffff, v{VB+nt}")
        k("s_sub_u32 s49, s49, 1")
        k("s_cmp_lg_u32 s49, 0")
        k(f"s_cbranch_scc1 {L}")
    loop(2)
    k(f"v_lshlrev_b32 v4, 6, v{Q}")
    k("s_lshl_b32 s35, s33, 8")
    k(f"s_add_u32 s35, s35, {L_LN}")
    k("v_add_u32 v4, s35, v4")
    RS=T
    for a in range(4): k(f"ds_read_b128 v[{RS+4*a}:{RS+4*a+3}], v4 offset:{16*a}")
    k("s_waitcnt lgkmcnt(0)")
    T2=180
    for nt in range(n):
        for h in range(2):
            for j in range(4):
                rr=4*h+j; a=ACC+16*h+4*nt+j
                k(f"v_fma_f32 v{T2+rr}, -v{RS+2*rr+1}, v{CS2+nt}, v{BS2+nt}")
            for j in range(4):
                rr=4*h+j; a=ACC+16*h+4*nt+j
                k(f"v_fma_f32 v{a}, v{a}, v{RS+2*rr}, v{T2+rr}")
        regs=[ACC+16*h+4*nt+j for h in range(2) for j in range(4)]
        gelu(k,regs,[T2+x for x in range(8)],64)
        for h in range(2):
            for jp in range(2):
                k(f"v_cvt_pk_bf16_f32 v{ZP+4*nt+2*h+jp}, v{ACC+16*h+4*nt+2*jp}, v{ACC+16*h+4*nt+2*jp+1}")
    SU=188; SQ=196; U0=204
    for nt in range(n):
        for d in range(4):
            unpack_bf16(k, ZP+4*nt+d, U0+2*d, U0+2*d+1)
        for rr in range(8):
            if nt==0:
                k(f"v_mov_b32 v{SU+rr}, v{U0+rr}")
                k(f"v_mul_f32 v{SQ+rr}, v{U0+rr}, v{U0+rr}")
            else:
                k(f"v_add_f32 v{SU+rr}, v{SU+rr}, v{U0+rr}")
                k(f"v_fmac_f32 v{SQ+rr}, v{U0+rr}, v{U0+rr}")
    dpp_reduce16(k,[SU+x for x in range(16)])
    k(f"v_mov_b32 v212, v{SU}")
    k(f"v_mov_b32 v213, v{SQ}")
    for rr in range(1,8):
        k(f"v_cmp_eq_u32 vcc, {rr}, v{I}")
        k(f"v_cndmask_b32 v212, v212, v{SU+rr}, vcc")
        k(f"v_cndmask_b32 v213, v213, v{SQ+rr}, vcc")
    k("v_or_b32 v213, 0x80000000, v213")
    k(f"v_lshl_add_u32 v4, v{Q}, 3, v{I}")
    k("v_lshlrev_b32 v4, 7, v4")
    k(f"v_mov_b32 v5, {hex(OOB)}")
    k(f"v_cmp_gt_u32 vcc, 8, v{I}")
    k("v_cndmask_b32 v4, v5, v4, vcc")
    k("s_lshl_b32 s35, s30, 13")
    k("s_lshl_b32 s36, s33, 12")
    k("s_add_u32 s35, s35, s36")
    k(f"s_add_u32 s35, s35, {WS_STAT}")
    k("s_lshl_b32 s36, s31, 4")
    k("s_lshl_b32 s37, s34, 3")
    k("s_add_u32 s36, s36, s37")
    k("s_add_u32 s36, s36, s35")
    k("buffer_store_dwordx2 v[212:213], v4, s[12:15], s36 offen sc1")
    loop(1)
    k(f"v_lshrrev_b32 v4, 2, v{I}")
    k(f"v_and_b32 v5, 3, v{I}")
    k("v_lshl_add_u32 v4, v4, 3, v5")
    k("s_lshl_b32 s36, s33, 5")
    k("v_add_u32 v4, s36, v4")
    k("v_lshlrev_b32 v4, 3, v4")
    k(f"v_add_u32 v4, {L_LN}, v4")
    k(f"ds_read_b64 v[{T}:{T+1}], v4")
    k(f"ds_read_b64 v[{T+2}:{T+3}], v4 offset:32")
    k("s_waitcnt lgkmcnt(0)")
    k("s_lshl_b32 s36, s30, 3")
    k("s_add_u32 s36, s36, s31")
    k("s_lshl_b32 s36, s36, 2")
    k("s_lshl_b32 s37, s33, 1")
    k("s_add_u32 s36, s36, s37")
    k("s_mul_i32 s36, s36, 7")
    k("s_lshl_b32 s37, s34, 2")
    k("s_add_u32 s36, s36, s37")
    k("s_lshl_b32 s36, s36, 9")
    k(f"s_add_u32 s36, s36, {WS_Z1}")
    k("v_lshlrev_b32 v5, 3, v1")
    T2=180
    for h in range(2):
        for nt in range(n):
            for j in range(4):
                k(f"v_fma_f32 v{T2+j}, -v{T+2*h+1}, v{CS1+4*nt+j}, v{BS1+4*nt+j}")
            for j in range(4):
                a=ACC+16*h+4*nt+j
                k(f"v_fma_f32 v{a}, v{a}, v{T+2*h}, v{T2+j}")
        regs=[ACC+16*h+4*nt+j for nt in range(n) for j in range(4)]
        gelu(k,regs,[T2+x for x in range(len(regs))],64)
        for nt in range(n):
            a=ACC+16*h+4*nt
            k(f"v_cvt_pk_bf16_f32 v{a}, v{a}, v{a+1}")
            k(f"v_cvt_pk_bf16_f32 v{a+1}, v{a+2}, v{a+3}")
            k(f"buffer_store_dwordx2 v[{a}:{a+1}], v5, s[12:15], s36 offen offset:{nt*512}")
        if h==0: k("s_add_u32 s36, s36, 3584")
    k("v_lshlrev_b32 v4, 6, v1")
    L=k.newlabel("poll")
    k("s_mov_b32 s49, 0x20000")
    k.label(L)
    for a in range(4): k(f"buffer_load_dwordx4 v[{T+4*a}:{T+4*a+3}], v4, s[12:15], s35 offen offset:{16*a} sc1")
    k("s_waitcnt vmcnt(0)")
    k(f"v_min_u32 v5, v{T+1}, v{T+3}")
    for a in range(1,4):
        k(f"v_min_u32 v5, v5, v{T+4*a+1}")
        k(f"v_min_u32 v5, v5, v{T+4*a+3}")
    k("v_cmp_eq_u32 vcc, 0, v5")
    D_=k.newlabel("pdone")
    k(f"s_cbranch_vccz {D_}")
    k("s_sleep 2")
    k("s_sub_u32 s49, s49, 1")
    k("s_cmp_lg_u32 s49, 0")
    k(f"s_cbranch_scc1 {L}")
    k.label(D_)
    k(f"v_add_f32 v5, v{T}, v{T+2}")
    k(f"v_add_f32 v6, abs(v{T+1}), abs(v{T+3})")
    for a in range(1,4):
        k(f"v_add_f32 v5, v5, v{T+4*a}")
        k(f"v_add_f32 v6, v6, abs(v{T+4*a+1})")
        k(f"v_add_f32 v5, v5, v{T+4*a+2}")
        k(f"v_add_f32 v6, v6, abs(v{T+4*a+3})")
    k("v_add_f32 v5, v5, v5 quad_perm:[1,0,3,2] row_mask:0xf bank_mask:0xf")
    k("v_add_f32 v6, v6, v6 quad_perm:[1,0,3,2] row_mask:0xf bank_mask:0xf")
    inv=1.0/FH
    k(f"v_mul_f32 v5, {f2u(inv)}, v5")
    k(f"v_mul_f32 v6, {f2u(inv)}, v6")
    k("v_fma_f32 v6, -v5, v5, v6")
    k("v_max_f32 v6, 0, v6")
    k("v_add_f32 v6, 0x3727c5ac, v6")
    k("v_rsq_f32 v6, v6")
    k("v_mul_f32 v7, v5, v6")
    k("v_lshrrev_b32 v4, 1, v1")
    k("v_lshlrev_b32 v4, 3, v4")
    k("s_lshl_b32 s36, s3, 8")
    k(f"s_add_u32 s36, s36, {L_SCR}")
    k("v_add_u32 v4, s36, v4")
    k("ds_write_b64 v4, v[6:7]")
    k(f"v_lshlrev_b32 v4, 6, v{Q}")
    k("v_add_u32 v4, s36, v4")
    k("s_waitcnt lgkmcnt(0)")
    for a in range(4): k(f"ds_read_b128 v[{T+4*a}:{T+4*a+3}], v4 offset:{16*a}")
    k("s_waitcnt lgkmcnt(0)")
    k("s_mul_i32 s36, s31, 7")
    k("s_lshl_b32 s37, s34, 2")
    k("s_add_u32 s36, s36, s37")
    k("s_lshl_b32 s36, s36, 6")
    k("s_lshl_b32 s37, s30, 1")
    k("s_add_u32 s36, s36, s37")
    k("s_add_u32 s36, s36, s33")
    k("s_lshl_b32 s36, s36, 10")
    k(f"s_add_u32 s36, s36, {WS_Z2N}")
    k("v_lshlrev_b32 v5, 4, v1")
    U0=204
    for nt in range(n):
        for d in range(4): unpack_bf16(k, ZP+4*nt+d, U0+2*d, U0+2*d+1)
        for rr in range(8):
            k(f"v_fma_f32 v{U0+rr}, v{U0+rr}, v{T+2*rr}, -v{T+2*rr+1}")
        for d in range(4):
            k(f"v_cvt_pk_bf16_f32 v{ZP+4*nt+d}, v{U0+2*d}, v{U0+2*d+1}")
        k(f"buffer_store_dwordx4 v[{ZP+4*nt}:{ZP+4*nt+3}], v5, s[12:15], s36 offen")
        if nt<n-1: k("s_add_u32 s36, s36, 65536")
```

```python
from common import *
K5_GRID=256
K5_LDS=131072
NT=7

def gen_k5():
    k=Kernel("k5_kernel"); vm=VM(k)
    k(f"s_cmp_ge_u32 s2, {K5_GRID}")
    k("s_cbranch_scc1 k5_end")
    ldptr(k,4,A_WSP); ldptr(k,6,A_WS); ldptr(k,24,A_BSP)
    k("v_and_b32 v1, 63, v0")
    k("v_lshrrev_b32 v2, 6, v0")
    k("s_nop 0")
    k("v_readfirstlane_b32 s3, v2")
    decode_rbj(k)
    k("s_waitcnt lgkmcnt(0)")
    srd(k,8,4,S*S*2)
    srd(k,12,6,WS_SIZE)
    srd(k,16,24,S*2)
    Q=2; I=3
    k(f"v_lshrrev_b32 v{Q}, 4, v1")
    k(f"v_and_b32 v{I}, 15, v1")
    k("v_lshrrev_b32 v8, 3, v1")
    k("v_and_b32 v9, 7, v1")
    k("v_bfe_u32 v10, v8, 1, 1")
    k("v_xor_b32 v9, v9, v10")
    k("v_lshlrev_b32 v9, 4, v9")
    k("v_lshl_add_u32 v4, v8, 12, v9")
    for b in range(1,4): k(f"v_xor_b32 v{4+b}, {32*b}, v4")
    k("v_lshlrev_b32 v12, 4, v1")
    for nt in range(1,NT): k(f"v_add_u32 v{12+nt}, {nt*65536}, v12")
    k("s_lshl_b32 s33, s30, 18")
    k("s_lshl_b32 s34, s3, 10")
    k("s_add_u32 s33, s33, s34")
    k("s_lshl_b32 s35, s3, 15")
    k("s_mul_i32 s36, s31, 7")
    k("s_lshl_b32 s36, s36, 16")
    k("s_lshl_b32 s37, s3, 14")
    k("s_add_u32 s36, s36, s37")
    k(f"s_add_u32 s36, s36, {WS_Z2N}")
    Z1R=20
    k("s_lshl_b32 s38, s30, 3")
    k("s_add_u32 s38, s38, s31")
    k("s_lshl_b32 s38, s38, 2")
    k("s_add_u32 s38, s38, s3")
    k("s_mul_i32 s38, s38, 3584")
    k(f"s_add_u32 s38, s38, {WS_Z1}")
    k("v_lshlrev_b32 v19, 3, v1")
    for nt in range(NT):
        vm.op(f"buffer_load_dwordx2 v[{Z1R+2*nt}:{Z1R+2*nt+1}], v19, s[12:15], s38 offen offset:{nt*512}","epi")
    k(f"v_lshrrev_b32 v8, 2, v{I}")
    k(f"v_and_b32 v9, 3, v{I}")
    k("v_lshl_add_u32 v8, v8, 3, v9")
    k("s_lshl_b32 s39, s30, 6")
    k("s_lshr_b32 s40, s3, 1")
    k("s_lshl_b32 s40, s40, 5")
    k("s_add_u32 s39, s39, s40")
    k("s_and_b32 s40, s3, 1")
    k("s_lshl_b32 s40, s40, 2")
    k("s_add_u32 s39, s39, s40")
    k("v_add_u32 v9, s39, v8")
    k("v_lshlrev_b32 v9, 1, v9")
    vm.op("buffer_load_ushort v34, v9, s[16:19], 0 offen","epi")
    k(f"v_lshrrev_b32 v9, 1, v{I}")
    k(f"v_xor_b32 v9, v9, v{Q}")
    k("v_lshlrev_b32 v9, 4, v9")
    k("v_lshl_add_u32 v36, v8, 7, v9")
    k("v_add_u32 v36, s35, v36")
    k("v_xor_b32 v37, 64, v36")
    ACC=64; WF=176
    def issueA(kc):
        slot=kc%4
        ops=[]
        for idx in range(8):
            ops.append([f"s_add_u32 s41, s33, {idx*32768+kc*128}",
                        f"s_add_u32 m0, s35, {slot*8192+idx*1024}",
                        (f"buffer_load_dwordx4 v{4+(idx&3)}, s[8:11], s41 offen lds",("A",kc))])
        return ops
    def issueZ(kc):
        buf=kc%3
        ops=[]
        for kk in range(2):
            for nt in range(NT):
                r=buf*56+kk*28+nt*4
                pre=[f"s_add_u32 s42, s36, {kc*2048}"] if (kk==0 and nt==0) else []
                ops.append(pre+[(f"buffer_load_dwordx4 a[{r}:{r+3}], v{12+nt}, s[12:15], s42 offen offset:{kk*1024}",("Z",kc))])
        return ops
    def emit(op):
        for x in op:
            if isinstance(x,tuple): vm.op(x[0],x[1])
            else: k(x)
    for kc in range(2):
        for o in issueA(kc): emit(o)
        for o in issueZ(kc): emit(o)
    for o in issueA(2): emit(o)
    vm.maxcheck()
    for kc in range(8):
        vm.wait(("A",kc),("Z",kc))
        slot=kc%4; buf=kc%3
        for kk in range(2):
            for mt in range(4):
                r=WF+kk*16+mt*4
                k(f"ds_read_b128 v[{r}:{r+3}], v{36+kk} offset:{slot*8192+(mt>>1)*4096+(mt&1)*512}")
        pend=[]
        if kc+2<8: pend+=issueZ(kc+2)
        if kc+3<8: pend+=issueA(kc+3)
        n=0
        for kk in range(2):
            k(f"s_waitcnt lgkmcnt({4 if kk==0 else 0})")
            for nt in range(NT):
                for mt in range(4):
                    a=ACC+(mt*7+nt)*4; z=buf*56+kk*28+nt*4; w=WF+kk*16+mt*4
                    c="0" if (kc==0 and kk==0) else f"v[{a}:{a+3}]"
                    k(f"v_mfma_f32_16x16x32_bf16 v[{a}:{a+3}], a[{z}:{z+3}], v[{w}:{w+3}], {c}")
                    n+=1
                    if n%2==0 and pend: emit(pend.pop(0))
        while pend: emit(pend.pop(0))
        vm.maxcheck()
    k("v_lshlrev_b32 v8, 4, v1")
    k("v_add_u32 v9, s35, v8")
    for t in range(28):
        k(f"ds_write_b128 v9, v[{ACC+4*t}:{ACC+4*t+3}] offset:{t*1024}")
    k("s_waitcnt lgkmcnt(0)")
    k("s_barrier")
    k("s_mul_i32 s41, s3, 7168")
    k("v_add_u32 v9, s41, v8")
    k("v_add_u32 v10, 0x10000, v9")
    R=ACC
    for src in range(4):
        for nt in range(NT):
            r=R+(src*7+nt)*4
            k(f"ds_read_b128 v[{r}:{r+3}], v{9+(src>>1)} offset:{(src&1)*32768+nt*1024}")
        if src==1 or src==3: k("s_waitcnt lgkmcnt(0)")
    for nt in range(NT):
        for j in range(4):
            a=R+nt*4+j
            k(f"v_add_f32 v{a}, v{a}, v{R+(7+nt)*4+j}")
            k(f"v_add_f32 v{R+(14+nt)*4+j}, v{R+(14+nt)*4+j}, v{R+(21+nt)*4+j}")
    vm.wait("epi")
    k("v_lshlrev_b32 v34, 16, v34")
    for nt in range(NT):
        for j in range(4):
            a=R+nt*4+j
            k(f"v_add_f32 v{a}, v{a}, v{R+(14+nt)*4+j}")
        for j in range(4):
            a=R+nt*4+j
            k(f"v_add_f32 v{a}, v{a}, v34")
    k("s_lshl_b32 s41, s30, 2")
    k("s_add_u32 s41, s41, s3")
    k(f"s_mul_i32 s41, s41, {28*1024}")
    k(f"s_add_u32 s41, s41, {WS_U}")
    k("s_mul_i32 s42, s31, 7")
    for nt in range(NT):
        a=R+nt*4
        unpack_bf16(k, Z1R+2*nt, 40, 41)
        unpack_bf16(k, Z1R+2*nt+1, 42, 43)
        for j in range(4): k(f"v_mul_f32 v{a+j}, v{a+j}, v{40+j}")
        k(f"v_cvt_pk_bf16_f32 v{a}, v{a}, v{a+1}")
        k(f"v_cvt_pk_bf16_f32 v{a+1}, v{a+2}, v{a+3}")
        k(f"s_add_u32 s43, s42, {nt}")
        k("s_lshr_b32 s44, s43, 1")
        k("s_lshl_b32 s44, s44, 10")
        k("s_and_b32 s43, s43, 1")
        k("s_lshl_b32 s43, s43, 3")
        k("s_add_u32 s44, s44, s43")
        k("s_add_u32 s44, s44, s41")
        k(f"buffer_store_dwordx2 v[{a}:{a+1}], v8, s[12:15], s44 offen")
    k.label("k5_end")
    k("s_endpgm")
    return k
```

```python
from common import *
K6_GRID=256
K6_LDS=896*128

def gen_k6():
    k=Kernel("k6_kernel"); vm=VM(k)
    k(f"s_cmp_ge_u32 s2, {K6_GRID}")
    k("s_cbranch_scc1 k6_end")
    ldptr(k,4,A_WOUT); ldptr(k,6,A_WS); ldptr(k,24,A_OUT)
    k("v_and_b32 v1, 63, v0")
    k("v_lshrrev_b32 v2, 6, v0")
    k("s_nop 0")
    k("v_readfirstlane_b32 s3, v2")
    decode_rbj(k)
    k("s_waitcnt lgkmcnt(0)")
    srd(k,8,4,FH*D*2)
    srd(k,12,6,WS_SIZE)
    srd(k,16,24,S*D*2)
    Q=2; I=3
    k(f"v_lshrrev_b32 v{Q}, 4, v1")
    k(f"v_and_b32 v{I}, 15, v1")
    k(f"v_lshrrev_b32 v8, 2, v{I}")
    k(f"v_and_b32 v9, 3, v{I}")
    k("v_lshl_add_u32 v8, v8, 3, v9")
    k("s_lshl_b32 s39, s30, 6")
    k("s_lshr_b32 s40, s3, 1")
    k("s_lshl_b32 s40, s40, 5")
    k("s_add_u32 s39, s39, s40")
    k("s_and_b32 s40, s3, 1")
    k("s_lshl_b32 s40, s40, 2")
    k("s_add_u32 s39, s39, s40")
    k("v_add_u32 v8, s39, v8")
    k(f"v_and_b32 v9, 1, v{Q}")
    k("v_lshlrev_b32 v9, 4, v9")
    k(f"v_lshrrev_b32 v10, 1, v{Q}")
    k("v_lshl_add_u32 v9, v10, 3, v9")
    k("s_lshl_b32 s40, s31, 6")
    k("v_add_u32 v9, s40, v9")
    k("v_lshlrev_b32 v10, 1, v9")
    k("v_lshl_add_u32 v4, v8, 10, v10")
    k("v_lshlrev_b32 v5, 2, v9")
    k(f"s_mov_b32 s41, {WS_X1}")
    vm.op("buffer_load_dwordx4 v[12:15], v4, s[12:15], s41 offen","epi")
    vm.op("buffer_load_dwordx4 v[16:19], v4, s[12:15], s41 offen offset:64","epi")
    k(f"s_mov_b32 s41, {WS_MOD+5*2048}")
    vm.op("buffer_load_dwordx4 v[20:23], v5, s[12:15], s41 offen","epi")
    vm.op("buffer_load_dwordx4 v[24:27], v5, s[12:15], s41 offen offset:16","epi")
    vm.op("buffer_load_dwordx4 v[28:31], v5, s[12:15], s41 offen offset:128","epi")
    vm.op("buffer_load_dwordx4 v[32:35], v5, s[12:15], s41 offen offset:144","epi")
    k("v_lshrrev_b32 v8, 3, v1")
    k("v_and_b32 v9, 7, v1")
    k("v_bfe_u32 v10, v8, 1, 2")
    k("v_lshlrev_b32 v10, 1, v10")
    k("v_xor_b32 v9, v9, v10")
    k("v_lshlrev_b32 v9, 4, v9")
    k("v_lshl_add_u32 v6, v8, 10, v9")
    k("v_lshlrev_b32 v7, 4, v1")
    k("s_lshl_b32 s33, s3, 13")
    k("s_lshl_b32 s34, s31, 7")
    k("s_add_u32 s33, s33, s34")
    k("s_lshl_b32 s35, s3, 10")
    k("s_lshl_b32 s36, s30, 2")
    k("s_add_u32 s36, s36, s3")
    k(f"s_mul_i32 s36, s36, {28*1024}")
    k(f"s_add_u32 s36, s36, {WS_U}")
    UF=64
    for ks in range(28):
        k(f"s_add_u32 m0, s35, {ks*4096}")
        vm.op("buffer_load_dwordx4 v6, s[8:11], s33 offen lds",("W",ks))
        if ks<27: k("s_add_u32 s33, s33, 32768")
        vm.op(f"buffer_load_dwordx4 v[{UF+4*ks}:{UF+4*ks+3}], v7, s[12:15], s36 offen offset:{(ks%4)*1024}",("U",ks))
        if ks%4==3: k("s_add_u32 s36, s36, 4096")
    vm.maxcheck()
    k("v_bfe_u32 v8, v1, 2, 2")
    k(f"v_lshl_add_u32 v9, v{Q}, 2, v8")
    k("v_bfe_u32 v10, v9, 1, 2")
    k("v_lshlrev_b32 v10, 5, v10")
    k("v_lshl_add_u32 v10, v9, 7, v10")
    k("v_and_b32 v11, 3, v1")
    k("v_lshl_add_u32 v10, v11, 3, v10")
    VB=40
    for dt in range(4):
        k(f"v_xor_b32 v{VB+dt}, {32*dt}, v10")
        k(f"v_add_u32 v{VB+4+dt}, 0x10000, v{VB+dt}")
    WF=176; ACC=48
    def rd(ks,buf):
        for dt in range(4):
            r=WF+16*buf+4*dt
            vb=VB+dt+(4 if ks>=16 else 0); off=(ks%16)*4096
            k(f"ds_read_b64_tr_b16 v[{r}:{r+1}], v{vb} offset:{off}")
            k(f"ds_read_b64_tr_b16 v[{r+2}:{r+3}], v{vb} offset:{off+2048}")
    def cp(ks,buf):
        for dt in range(4):
            r=WF+16*buf+4*dt; a=ACC+4*dt
            c="0" if ks==0 else f"v[{a}:{a+3}]"
            k(f"v_mfma_f32_16x16x32_bf16 v[{a}:{a+3}], v[{r}:{r+3}], v[{UF+4*ks}:{UF+4*ks+3}], {c}")
    for st in range(4):
        steps=list(range(7*st,7*st+7))
        vm.wait(("W",steps[-1]),("U",steps[-1]))
        k("s_barrier")
        pipeline(k,steps,rd,cp,8,1,3)
    for m in range(2):
        for j in range(4):
            k(f"v_permlane16_swap_b32 v{ACC+8*m+j}, v{ACC+8*m+4+j}")
    for m in range(2):
        for j in range(4):
            unpack_bf16(k, 12+4*m+j, 64+2*j, 65+2*j)
        for e in range(8):
            k(f"v_fmac_f32 v{64+e}, v{ACC+8*m+e}, v{20+8*m+e}")
        for j in range(4):
            k(f"v_cvt_pk_bf16_f32 v{72+4*m+j}, v{64+2*j}, v{65+2*j}")
        k(f"buffer_store_dwordx4 v[{72+4*m}:{75+4*m}], v4, s[16:19], 0 offen offset:{64*m}")
    k.label("k6_end")
    k("s_endpgm")
    return k
```

```python
import sys
from common import *
import k1,k2,k3,k4,k5,k6
HDR=open('adaLN_cond__spectral_fnet__mixer_gmlp__prompt.s.ref').read().split('\n')
hdr=[l for l in HDR if l.startswith(';') and 'launch' not in l and 'Override' not in l]
def build(path, launches=None):
    ks=[(k1.gen_k1(),k1.K1_GRID,512,k1.K1_LDS),(k2.gen_k2(),k2.K2_GRID,256,k2.K2_LDS),(k3.gen_k3(),k3.K3_GRID,256,k3.K3_LDS),
        (k4.gen_k4(),k4.K4_GRID,256,k4.K4_LDS),(k5.gen_k5(),k5.K5_GRID,256,k5.K5_LDS),(k6.gen_k6(),k6.K6_GRID,256,k6.K6_LDS)]
    out=list(hdr)
    for (k,g,b,l) in ks: out.append(f"; @launch kernel={k.name} grid=({g},1,1) block=({b},1,1) lds={l}")
    out.append('.amdgcn_target "amdgcn-amd-amdhsa--gfx950"')
    out.append('.text')
    for (k,g,b,l) in ks:
        out.append(k.text())
        print(k.name,"vgpr",k.nv,"agpr",k.na,"sgpr",k.ns,"inst",k.ninst,"lds",l,file=sys.stderr)
    out.append('.section .rodata,"a"')
    for (k,g,b,l) in ks: out.append(k.desc())
    open(path,'w').write("\n".join(out)+"\n")
if __name__=="__main__":
    build(sys.argv[1] if len(sys.argv)>1 else 'adaLN_cond__spectral_fnet__mixer_gmlp__prompt.s')
```
